```python
import torch

def _softmax(x, axis=-1):
    return torch.softmax(x, dim=axis)
def _gelu(x):
    return torch.nn.functional.gelu(x, approximate="tanh")
def _silu(x):
    return torch.nn.functional.silu(x)
def _sigmoid(x):
    return torch.sigmoid(x)
def _layernorm(x, axis=-1, eps=1e-5):
    m = x.mean(dim=axis, keepdim=True)
    v = x.var(dim=axis, keepdim=True, unbiased=False)
    return (x - m) / torch.sqrt(v + eps)
def _scatter_add(tgt, idx, src, axis=0):
    return tgt.clone().index_add_(axis, idx, src)
def _segment_sum(src, seg, n):
    out = torch.zeros((n,) + src.shape[1:], dtype=src.dtype)
    return out.index_add_(0, seg, src)
def _pad(x, pw):
    flat = tuple(v for pair in reversed(pw) for v in pair)
    return torch.nn.functional.pad(x, flat)

kernel_name = 'standalone__depthwise_separable__vision'

def setup_inputs():

    _w = (lambda a: (lambda t: t.to(torch.bfloat16) if t.is_floating_point() else t)(torch.as_tensor(a)))
    H = W = 512
    C = 192
    k = 1
    return {
        "x": _w((lambda *s: torch.randn(*s, dtype=torch.bfloat16) * 0.05)(1, H, W, C)),
        "dw": _w((lambda *s: torch.randn(*s, dtype=torch.bfloat16) * 0.05)(k, k, C)),
        "pw": _w((lambda *s: torch.randn(*s, dtype=torch.bfloat16) * 0.05)(C, C)),
    }

def reference(x, dw, pw):
    B, H, W, C = x.shape
    k = dw.shape[0]
    pad = k // 2
    xp = _pad(x, ((0,0),(pad,pad),(pad,pad),(0,0)))
    out = torch.zeros_like(x)
    for i in range(k):
        for j in range(k):
            out = out + xp[:, i:i+H, j:j+W, :] * dw[i, j][None, None, None, :]
    return torch.einsum('bhwc,cd->bhwd', out, pw)
```

```python
import sys
XB=100663296
NAME="standalone__depthwise_separable__vision_kernel"
HEADER=open("standalone__depthwise_separable__vision.s.ref").read().split("; Override launch")[0]

def gen(lflag="", sflag="", nwg=256, depth=4, wflag="", instr=False):
    wpw=4
    nwaves=nwg*wpw
    tpw=16384//nwaves
    step=nwaves*6144
    o=[]; A=o.append
    V_XOFF=1; V_SA=2; V_SB=3; T=4
    DWF=8
    ACC=56
    OUT=104
    XB0=128
    assert XB0+depth*24<=224
    WV=224
    def wfrag(s,t):
        f=s*12+t
        if f<64: return f"a[{4*f}:{4*f+3}]"
        g=f-64
        return f"v[{WV+4*g}:{WV+4*g+3}]"
    A(f"s_cmp_ge_u32 s2, {nwg}\ns_cbranch_scc1 L_end")
    if instr:
        A("s_memrealtime s[70:71]\ns_memtime s[72:73]\ns_load_dwordx2 s[80:81], s[0:1], 32")
    A("s_load_dwordx4 s[4:7], s[0:1], 0")
    A("s_load_dwordx4 s[8:11], s[0:1], 16")
    A("v_lshrrev_b32 v4, 6, v0")
    A("v_and_b32 v0, 63, v0")
    A("v_readfirstlane_b32 s3, v4")
    A("v_and_b32 v5, 15, v0")
    A("v_lshrrev_b32 v6, 4, v0")
    A(f"v_mul_u32_u24 v{V_XOFF}, 384, v5")
    A(f"v_lshl_add_u32 v{V_XOFF}, v6, 4, v{V_XOFF}")
    A(f"v_mul_u32_u24 v7, 1536, v6")
    A(f"v_lshl_add_u32 v{V_SA}, v5, 4, v7")
    A(f"v_lshl_add_u32 v{V_SB}, v5, 3, v7")
    A(f"v_add_u32 v{V_SB}, 256, v{V_SB}")
    A(f"s_lshl_b32 s12, s2, 2\ns_add_u32 s12, s12, s3")
    A(f"s_mul_i32 s13, s12, 6144")
    A(f"s_mov_b32 s14, s13")
    A("s_waitcnt lgkmcnt(0)")
    A(f"s_mov_b32 s16, s4\ns_and_b32 s17, s5, 0xffff\ns_mov_b32 s18, {XB}\ns_mov_b32 s19, 0x20000")
    A(f"s_mov_b32 s20, s10\ns_and_b32 s21, s11, 0xffff\ns_mov_b32 s22, {XB}\ns_mov_b32 s23, 0x20000")
    A(f"s_mov_b32 s24, s8\ns_and_b32 s25, s9, 0xffff\ns_mov_b32 s26, 73728\ns_mov_b32 s27, 0x20000")
    A(f"s_mov_b32 s28, s6\ns_and_b32 s29, s7, 0xffff\ns_mov_b32 s30, 384\ns_mov_b32 s31, 0x20000")
    VWA=ACC; VWB=ACC+1; VW=ACC+2
    A(f"v_mul_u32_u24 v7, 3072, v6")
    A(f"v_lshl_add_u32 v{VWA}, v5, 4, v7")
    A(f"v_lshl_add_u32 v{VWB}, v5, 3, v7")
    A(f"v_add_u32 v{VWB}, 256, v{VWB}")
    stg=[r for r in range(ACC+8,ACC+48)]+[r for r in range(OUT,OUT+24)]+[r for r in range(WV,WV+16)]
    assert len(stg)==80
    vm=0
    for i in range(5):
        A(f"s_add_u32 s32, s3, {4*i}")
        A(f"s_mul_i32 s33, s32, 171\ns_lshr_b32 s33, s33, 9")
        A(f"s_mul_i32 s34, s33, 3\ns_sub_u32 s34, s32, s34")
        A(f"s_mul_i32 s35, s33, 12288")
        A(f"s_lshl_b32 s36, s34, 3")
        A(f"s_cmp_eq_u32 s34, 2")
        A(f"s_cselect_b32 s36, 0, s36")
        A(f"s_cselect_b64 vcc, -1, 0")
        A(f"s_add_u32 s{40+i}, s35, s36")
        A(f"s_mul_i32 s37, s33, 12\ns_lshl_b32 s38, s34, 2\ns_add_u32 s37, s37, s38\ns_lshl_b32 s{48+i}, s37, 10")
        A(f"v_cndmask_b32 v{VW+i}, v{VWA}, v{VWB}, vcc")
        for e in range(8):
            r=stg[i*16+e*2]
            assert stg[i*16+e*2+1]==r+1 and r%2==0
            A(f"buffer_load_dwordx2 v[{r}:{r+1}], v{VW+i}, s[24:27], s{40+i} offen offset:{e*384} {wflag}")
            vm+=1
    A(f"v_lshlrev_b32 v7, 4, v6")
    for s in range(6):
        r=DWF+24+4*s
        A(f"buffer_load_dwordx4 v[{r}:{r+3}], v7, s[28:31], 0 offen offset:{s*64}")
        vm+=1
    seq=[('W',0,vm)]
    def loads(t):
        base=XB0+(t%depth)*24
        for s in range(6):
            A(f"buffer_load_dwordx4 v[{base+4*s}:{base+4*s+3}], v{V_XOFF}, s[16:19], s13 offen offset:{s*64} {lflag}")
        A(f"s_add_u32 s13, s13, {step}")
        return 6
    for t in range(depth):
        seq.append(('L',t,loads(t)))
    A("s_mov_b32 s60, 0x05040100\ns_mov_b32 s61, 0x07060302")
    A(f"v_lshlrev_b32 v7, 4, v0")
    A(f"s_waitcnt vmcnt({depth*6})")
    for i in range(24):
        src=DWF+24+i
        A(f"v_lshlrev_b32 v{DWF+2*i}, 16, v{src}") if DWF+2*i!=src else None
        assert DWF+2*i!=src or False
        A(f"v_and_b32 v{DWF+2*i+1}, 0xffff0000, v{src}")
    TO=WV+16
    for i in range(5):
        if i==4:
            A("s_cmp_ge_u32 s3, 2\ns_cbranch_scc1 L_wskip")
        for pp in range(2):
            for hl in range(2):
                tt=2*pp+hl
                for h in range(4):
                    r0=stg[i*16+(2*h)*2+pp]; r1=stg[i*16+(2*h+1)*2+pp]
                    A(f"v_perm_b32 v{TO+4*tt+h}, v{r1}, v{r0}, s{60+hl}")
        A(f"v_add_u32 v4, s{48+i}, v7")
        for tt in range(4):
            A(f"ds_write_b128 v4, v[{TO+4*tt}:{TO+4*tt+3}] offset:{tt*1024}")
        A("s_waitcnt lgkmcnt(0)")
    A("L_wskip:")
    A("s_waitcnt lgkmcnt(0)\ns_barrier")
    for f in range(72):
        s,t=divmod(f,12)
        if f*1024<65536:
            A(f"ds_read_b128 {wfrag(s,t)}, v7 offset:{f*1024}")
        else:
            if f==64: A("v_add_u32 v4, 0x10000, v7")
            A(f"ds_read_b128 {wfrag(s,t)}, v4 offset:{f*1024-65536}")
    A("s_waitcnt lgkmcnt(0)")
    if instr:
        A("s_memrealtime s[74:75]\ns_waitcnt lgkmcnt(0)")
    def scale(base,s):
        ins=[]
        for d in range(4):
            x=base+4*s+d
            t0=T+2*(d&1); t1=t0+1
            ins.append(f"v_lshlrev_b32 v{t0}, 16, v{x}")
            ins.append(f"v_and_b32 v{t1}, 0xffff0000, v{x}")
            ins.append(f"v_mul_f32 v{t0}, v{t0}, v{DWF+8*s+2*d}")
            ins.append(f"v_mul_f32 v{t1}, v{t1}, v{DWF+8*s+2*d+1}")
            ins.append(f"v_cvt_pk_bf16_f32 v{x}, v{t0}, v{t1}")
        return ins
    def tile(t, waitcnt):
        base=XB0+(t%depth)*24
        A(f"s_waitcnt vmcnt({waitcnt})")
        for i in scale(base,0): A(i)
        A("s_nop 1")
        for s in range(6):
            fill = scale(base,s+1) if s<5 else []
            k=0
            for tt in range(12):
                c = f"v[{ACC+4*tt}:{ACC+4*tt+3}]"
                A(f"v_mfma_f32_16x16x32_bf16 {c}, v[{base+4*s}:{base+4*s+3}], {wfrag(s,tt)}, {c if s>0 else '0'}")
                if tt<10:
                    for _ in range(2):
                        if k<len(fill): A(fill[k]); k+=1
            assert k==len(fill)
        n=loads(t+depth)
        A("s_nop 4")
        cnt=0
        for r in range(4):
            b=OUT+6*r
            for pp in range(6):
                A(f"v_cvt_pk_bf16_f32 v{b+pp}, v{ACC+8*pp+r}, v{ACC+8*pp+4+r}")
        for r in range(4):
            b=OUT+6*r
            A(f"buffer_store_dwordx4 v[{b}:{b+3}], v{V_SA}, s[20:23], s14 offen offset:{r*384} {sflag}")
            A(f"buffer_store_dwordx2 v[{b+4}:{b+5}], v{V_SB}, s[20:23], s14 offen offset:{r*384} {sflag}")
            cnt+=2
        A(f"s_add_u32 s14, s14, {step}")
        return n,cnt
    for t in range(depth):
        idx=[i for i,e in enumerate(seq) if e[0]=='L' and e[1]==t][0]
        after=sum(e[2] for e in seq[idx+1:])
        n,c=tile(t,after)
        seq.append(('L',t+depth,n)); seq.append(('S',t,c))
    if instr:
        A("s_memrealtime s[90:91]\ns_waitcnt lgkmcnt(0)")
    niter=tpw//depth-1
    A(f"s_mov_b32 s15, {niter}")
    A("L_loop:")
    for t in range(depth,2*depth):
        idx=[i for i,e in enumerate(seq) if e[0]=='L' and e[1]==t][0]
        after=sum(e[2] for e in seq[idx+1:])
        n,c=tile(t,after)
        seq.append(('L',t+depth,n)); seq.append(('S',t,c))
    A("s_sub_u32 s15, s15, 1\ns_cmp_lg_u32 s15, 0\ns_cbranch_scc1 L_loop")
    if instr:
        A("s_waitcnt vmcnt(0)")
        A("s_memrealtime s[76:77]\ns_memtime s[78:79]\ns_waitcnt lgkmcnt(0)")
        A("s_load_dwordx2 s[84:85], s[0:1], 40\ns_waitcnt lgkmcnt(0)")
        A("s_and_b32 s85, s85, 0xffff\ns_mov_b32 s86, 65536\ns_mov_b32 s87, 0x20000")
        A("s_and_b32 s81, s81, 0xffff\ns_mov_b32 s82, 256\ns_mov_b32 s83, 0x20000")
        A("s_mov_b64 exec, 1")
        A("v_mov_b32 v4, s70")
        A("s_sub_u32 s88, s74, s70\nv_mov_b32 v5, s88")
        A("s_sub_u32 s88, s90, s70\nv_mov_b32 v6, s88")
        A("s_sub_u32 s88, s76, s70\nv_mov_b32 v7, s88")
        A("s_lshl_b32 s88, s12, 4\nv_mov_b32 v8, s88")
        A("buffer_store_dwordx4 v[4:7], v8, s[84:87], 0 offen")
        A("s_mov_b32 s88, 256")
        for k,w in enumerate([0,341,682,1023]):
            A(f"s_cmp_eq_u32 s12, {w}\ns_cselect_b32 s88, {k*16}, s88")
        A("v_mov_b32 v8, s88")
        A("buffer_store_dwordx4 v[4:7], v8, s[80:83], 0 offen")
        A("s_waitcnt vmcnt(0)")
    A("L_end:\ns_endpgm")
    src=HEADER+f"; @launch grid=({nwg},1,1) block=(256,1,1) lds=73728\n"
    src+=f""".amdgcn_target "amdgcn-amd-amdhsa--gfx950"
.text
.globl {NAME}
.p2align 8
.type {NAME},@function
{NAME}:
"""
    src+="\n".join(o)+"\n"
    src+=f""".section .rodata,"a"
.p2align 6
.amdhsa_kernel {NAME}
  .amdhsa_next_free_vgpr 512
  .amdhsa_next_free_sgpr 96
  .amdhsa_accum_offset 256
  .amdhsa_group_segment_fixed_size 0
  .amdhsa_kernarg_size 48
  .amdhsa_user_sgpr_count 2
  .amdhsa_user_sgpr_kernarg_segment_ptr 1
  .amdhsa_system_sgpr_workgroup_id_x 1
  .amdhsa_float_denorm_mode_32 3
.end_amdhsa_kernel
"""
    return src
if __name__=="__main__":
    variants={"v1":dict(),"v1_ntl":dict(lflag="nt"),"v1_nts":dict(sflag="nt"),"v1_nt":dict(lflag="nt",sflag="nt"),"v1_i":dict(instr=True),"v1_nts_i":dict(sflag="nt",instr=True)}
    for k,v in variants.items():
        open(f"{k}.s","w").write(gen(**v))
```

```python
import gen1, re
NAME=gen1.NAME
def probe(argoff, start, size, n, stride):
    return f"""
.globl probe_kernel
.p2align 8
.type probe_kernel,@function
probe_kernel:
s_cmp_ge_u32 s2, 1
s_cbranch_scc1 P_end
s_load_dwordx2 s[4:5], s[0:1], {argoff}
s_waitcnt lgkmcnt(0)
s_mov_b32 s8, s4
s_and_b32 s9, s5, 0xffff
s_mov_b32 s10, {size}
s_mov_b32 s11, 0x20000
s_mov_b64 exec, 1
v_mov_b32 v1, {start}
s_mov_b32 s12, {n}
s_mov_b32 s13, {stride}
s_cmp_eq_u32 s12, 0
s_cbranch_scc1 P_end
P_loop:
buffer_load_dword v2, v1, s[8:11], 0 offen
s_waitcnt vmcnt(0)
v_and_b32 v2, 0, v2
v_add3_u32 v1, v1, v2, s13
s_sub_u32 s12, s12, 1
s_cmp_lg_u32 s12, 0
s_cbranch_scc1 P_loop
P_end:
s_endpgm
"""
desc=""".p2align 6
.amdhsa_kernel probe_kernel
  .amdhsa_next_free_vgpr 8
  .amdhsa_next_free_sgpr 16
  .amdhsa_accum_offset 8
  .amdhsa_group_segment_fixed_size 0
  .amdhsa_kernarg_size 48
  .amdhsa_user_sgpr_count 2
  .amdhsa_user_sgpr_kernarg_segment_ptr 1
  .amdhsa_system_sgpr_workgroup_id_x 1
.end_amdhsa_kernel
"""
base=gen1.gen()
XB=100663296; WS=402653184
cfg={"pr_none":(0,0,XB,0,0),"pr_x":(0,4096,XB,200,503296),"pr_out":(24,4096,XB,200,503296),
     "pr_wslo":(40,4096,WS,200,503296),"pr_wshi":(40,WS-XB+4096,WS,200,503296),"pr_wsmid":(40,WS-2*XB+4096,WS,200,503296)}
for k,a in cfg.items():
    s=base.replace("; @launch grid=(256,1,1) block=(256,1,1) lds=73728",
       f"; @launch kernel=probe_kernel grid=(1,1,1) block=(64,1,1) lds=0\n; @launch kernel={NAME} grid=(256,1,1) block=(256,1,1) lds=73728")
    s=s.replace('.section .rodata,"a"\n', probe(*a)+'.section .rodata,"a"\n'+desc)
    open(k+".s","w").write(s)
```
